```python
import torch

def _softmax(x, axis=-1):
    return torch.softmax(x, dim=axis)
def _gelu(x):
    return torch.nn.functional.gelu(x, approximate="tanh")
def _silu(x):
    return torch.nn.functional.silu(x)
def _sigmoid(x):
    return torch.sigmoid(x)
def _layernorm(x, axis=-1, eps=1e-5):
    m = x.mean(dim=axis, keepdim=True)
    v = x.var(dim=axis, keepdim=True, unbiased=False)
    return (x - m) / torch.sqrt(v + eps)
def _scatter_add(tgt, idx, src, axis=0):
    return tgt.clone().index_add_(axis, idx, src)
def _segment_sum(src, seg, n):
    out = torch.zeros((n,) + src.shape[1:], dtype=src.dtype)
    return out.index_add_(0, seg, src)
def _pad(x, pw):
    flat = tuple(v for pair in reversed(pw) for v in pair)
    return torch.nn.functional.pad(x, flat)

kernel_name = 'standalone__mha_block__prompt'

def setup_inputs():

    _w = (lambda a: (lambda t: t.to(torch.bfloat16) if t.is_floating_point() else t)(torch.as_tensor(a)))
    B, S, D, H = 1, 2048, 576, 32
    return {
        "x": _w((lambda *s: torch.randn(*s, dtype=torch.bfloat16) * 0.2)(B, S, D)),
        "wqkv": _w((lambda *s: torch.randn(*s, dtype=torch.bfloat16) * 0.2)(D, 3 * D)),
        "wo": _w((lambda *s: torch.randn(*s, dtype=torch.bfloat16) * 0.05)(D, D)),
    }

def reference(x, wqkv, wo):
    B, S, D = x.shape
    H = 32
    Dh = D // H
    qkv = (lambda x, *d: x.permute(*d))((x @ wqkv).reshape(B, S, 3, H, Dh), 2, 0, 3, 1, 4)
    q, k, v = qkv[0], qkv[1], qkv[2]
    scores = torch.einsum("bhqd,bhkd->bhqk", q, k) * (Dh ** -0.5)
    p = _softmax(scores, axis=-1)
    o = torch.einsum("bhqk,bhkd->bhqd", p, v)
    return (lambda x, *d: x.permute(*d))(o, 0, 2, 1, 3).reshape(B, S, D) @ wo
```

```python
import re, sys
TRANS = ("v_exp_f32", "v_log_f32", "v_rcp_f32", "v_rsq_f32", "v_sqrt_f32", "v_sin_f32", "v_cos_f32", "v_rcp_iflag_f32", "v_exp_f16")
def regs(tok):
    tok = tok.strip()
    neg = tok.lstrip("-")
    m = re.fullmatch(r"abs\((.*)\)", neg)
    if m: neg = m.group(1)
    m = re.fullmatch(r"\|(.*)\|", neg)
    if m: neg = m.group(1)
    m = re.fullmatch(r"([vas])\[(\d+):(\d+)\]", neg)
    if m: return {(m.group(1), i) for i in range(int(m.group(2)), int(m.group(3)) + 1)}
    m = re.fullmatch(r"([vas])(\d+)", neg)
    if m: return {(m.group(1), int(m.group(2)))}
    if neg in ("vcc", "vcc_lo", "vcc_hi"): return {("s", "vcc")}
    if neg in ("exec", "exec_lo", "exec_hi"): return {("s", "exec")}
    if neg == "m0": return {("s", "m0")}
    return set()
def passes(op):
    if "32x32x4_2b" in op or "32x32x1_2b" in op: return 16
    if "4x4x4" in op: return 2
    if "16x16x4_4b" in op: return 8
    if "32x32" in op: return 8
    if "16x16" in op: return 4
    raise ValueError(op)
class I: pass
def parse(text):
    ins = []; labels = {}
    for ln, line in enumerate(text.splitlines(), 1):
        s = line.split(";")[0].strip()
        if not s or s.startswith("."):
            continue
        m = re.fullmatch(r"([\w.$]+):", s)
        if m:
            labels[m.group(1)] = len(ins); continue
        p = s.split(None, 1)
        x = I(); x.op = p[0]; x.ln = ln; x.txt = s
        ops = []
        if len(p) > 1:
            ops = [o.strip() for o in p[1].split(",")]
            last = ops[-1].split()
            x.mods = last[1:]
            ops[-1] = last[0] if last else ""
        else:
            x.mods = []
        x.ops = ops
        op = x.op
        x.kind = "other"; x.w = set(); x.r = set(); x.ws = 1
        x.A = x.B = x.C = x.D = set()
        if op == "s_nop":
            x.ws = int(ops[0], 0) + 1
        if op.startswith("v_mfma") or op.startswith("v_smfmac"):
            x.kind = "mfma"; x.p = passes(op)
            x.D = regs(ops[0]); x.A = regs(ops[1]); x.B = regs(ops[2])
            if op.startswith("v_smfmac"):
                x.C = x.D; x.B = x.B | regs(ops[3])
            else:
                x.C = regs(ops[3])
            x.w = x.D; x.r = x.A | x.B | x.C
        elif op.startswith("v_"):
            x.kind = "valu"
            base = op.replace("_e32", "").replace("_e64", "")
            x.trans = base in TRANS
            nd = 1
            if base in ("v_add_co_u32", "v_sub_co_u32", "v_addc_co_u32", "v_subb_co_u32", "v_mad_u64_u32", "v_div_scale_f32"): nd = 2
            for o in ops[:nd]: x.w |= regs(o)
            for o in ops[nd:]: x.r |= regs(o)
            if base.startswith(("v_fmac", "v_writelane", "v_dot2c")) or "UNUSED_PRESERVE" in s: x.r |= regs(ops[0])
            if base.startswith("v_permlane") and "swap" in base:
                x.w |= regs(ops[1]); x.r |= regs(ops[0])
            if base.startswith("v_cmpx"): x.w |= {("s", "exec")}
        elif op.startswith(("buffer_", "global_")):
            x.kind = "vmem"
            lds = "lds" in x.mods or "_lds_" in op
            x.lds = lds
            if "load" in op and not lds:
                x.w = regs(ops[0])
                for o in ops[1:]: x.r |= regs(o)
            else:
                for o in ops: x.r |= regs(o)
                if "atomic" in op and "sc0" in x.mods: x.w = regs(ops[0])
            x.wide = set()
            if "store" in op and ("x3" in op or "x4" in op):
                x.wide = regs(ops[0]) if op.startswith("buffer_") else regs(ops[1])
            if lds: x.r |= {("s", "m0")}
        elif op.startswith("ds_"):
            x.kind = "ds"
            if "read" in op or "permute" in op or "swizzle" in op or "rtn" in op:
                x.w = regs(ops[0])
                for o in ops[1:]: x.r |= regs(o)
            else:
                for o in ops: x.r |= regs(o)
        elif op.startswith("s_"):
            x.kind = "salu"
            if op.startswith(("s_cmp", "s_waitcnt", "s_barrier", "s_cbranch", "s_branch", "s_endpgm", "s_setprio", "s_nop", "s_sleep", "s_bitcmp")):
                for o in ops: x.r |= regs(o)
            else:
                x.w = regs(ops[0])
                for o in ops[1:]: x.r |= regs(o)
                if "saveexec" in op: x.w |= {("s", "exec")}
        ins.append(x)
    for i, x in enumerate(ins):
        x.succ = []
        if x.op == "s_endpgm": continue
        if x.op == "s_branch":
            x.succ = [labels[x.ops[0]]]; continue
        if x.op.startswith("s_cbranch"):
            x.succ.append(labels[x.ops[0]])
        if i + 1 < len(ins): x.succ.append(i + 1)
    return ins
def need(a, b):
    n = 0; why = ""
    def up(k, w):
        nonlocal n, why
        if k > n: n, why = k, w
    vw = {r for r in a.w if r[0] in "va"}
    sw = {r for r in a.w if r[0] == "s"}
    if a.kind == "valu":
        if b.kind == "mfma" and vw & b.r: up(2, "valu->mfma")
        if b.kind == "valu":
            if a.trans and not b.trans and vw & b.r: up(1, "trans->valu")
            if b.op.startswith(("v_readlane", "v_readfirstlane")) and vw & b.r: up(1, "valu->readlane")
            if b.op.startswith("v_permlane") and vw & b.r: up(2, "valu->permlane")
            if ("dpp" in b.op or any(m.startswith(("row_", "quad_perm")) for m in b.mods)) and vw & b.r: up(2, "valu->dpp")
            if sw & b.r:
                up(4 if b.op.startswith(("v_readlane", "v_writelane")) else 2, "valu sgpr->valu")
            if ("sdwa" in a.op or any(m.startswith("op_sel") for m in a.mods)) and vw & (b.r | b.w): up(1, "sdwa->valu")
        if b.kind == "vmem" and sw & b.r: up(5, "valu sgpr->vmem")
        if ("s", "exec") in sw and b.kind == "mfma": up(4, "valu exec->mfma")
    if a.kind == "salu" and ("s", "m0") in sw and b.kind == "vmem" and b.lds: up(1, "m0->ldsdma")
    if a.kind == "vmem" and a.wide:
        if b.kind == "valu" and a.wide & b.w: up(2, "wide store war")
        elif a.wide & b.w: up(1, "wide store war")
    if a.kind == "mfma":
        p = a.p
        t_ov = {2: 4, 4: 6, 8: 10, 16: 18}[p]; t_rd = {2: 5, 4: 8, 8: 12, 16: 20}[p]; t_war = {2: 1, 4: 3, 8: 7, 16: 15}[p]
        if b.kind == "mfma":
            if a.D & b.C:
                if a.D == b.C and a.p == b.p: up(2 if p == 2 else 0, "mfma chain")
                else: up(t_ov, "mfma D->C overlap")
            if a.D & (b.A | b.B): up(t_rd, "mfma D->AB")
            if a.D & b.D and not (a.D & b.C): up(t_ov, "mfma WAW(conservative)")
        elif b.kind == "valu":
            if a.D & (b.r | b.w): up(t_rd, "mfma D->valu")
            if a.C & b.w: up(t_war, "mfma C war")
        elif b.kind in ("vmem", "ds"):
            if a.D & (b.r | b.w): up(t_rd, "mfma D->mem")
    return n, why
def check(text, verbose=True):
    ins = parse(text)
    bad = set()
    for i, a in enumerate(ins):
        if a.kind not in ("valu", "mfma", "vmem", "salu"): continue
        lim = 20 if a.kind == "mfma" else 5
        stack = [(s, 0) for s in a.succ]; seen = {}
        while stack:
            j, d = stack.pop()
            if d >= lim or seen.get(j, 99) <= d: continue
            seen[j] = d
            b = ins[j]
            n, why = need(a, b)
            if n > d: bad.add((a.ln, b.ln, n, d, why, a.txt, b.txt))
            for s in b.succ: stack.append((s, d + b.ws))
    for x in sorted(bad):
        if verbose: print(f"HAZARD line {x[0]} -> {x[1]}: need {x[2]} have {x[3]} ({x[4]})\n    {x[5]}\n    {x[6]}")
    return len(bad)
if __name__ == "__main__":
    n = check(open(sys.argv[1]).read())
    print("hazards:", n)
```

```python
import sys, math, struct
from hazard import check

L = []
def e(s=""):
    for line in s.split("\n"):
        L.append(line)
def f2u(x): return struct.unpack("<I", struct.pack("<f", x))[0]
def vr(a, n): return f"v[{a}:{a+n-1}]" if n > 1 else f"v{a}"

KV_OFF = 0
QQ_OFF = 0x480000
OO_OFF = 0x900000
WS_SIZE = 0xB40000
QSCALE = math.log2(math.e) / math.sqrt(18.0)

def srd(s, lo, size):
    e(f"""    s_mov_b32 s{s}, s{lo}
    s_mov_b32 s{s+1}, s{lo+1}
    s_mov_b32 s{s+2}, {size}
    s_mov_b32 s{s+3}, 0x00020000""")

def header(name):
    e(f""".text
.globl {name}
.p2align 8
.type {name},@function
{name}:""")

def descriptor(name, vgpr, sgpr=96):
    e(f""".section .rodata,"a"
.p2align 6
.amdhsa_kernel {name}
  .amdhsa_next_free_vgpr {vgpr}
  .amdhsa_next_free_sgpr {sgpr}
  .amdhsa_accum_offset {vgpr}
  .amdhsa_group_segment_fixed_size 0
  .amdhsa_kernarg_size 48
  .amdhsa_user_sgpr_count 2
  .amdhsa_user_sgpr_kernarg_segment_ptr 1
  .amdhsa_system_sgpr_workgroup_id_x 1
.end_amdhsa_kernel""")

def k1():
    header("qkv_kernel")
    e("""    s_cmp_ge_u32 s2, 224
    s_cbranch_scc1 K1_end
    s_load_dwordx4 s[4:7], s[0:1], 0          ; x, wqkv
    s_load_dwordx2 s[8:9], s[0:1], 40         ; ws
    v_lshrrev_b32 v1, 6, v0
    v_and_b32 v0, 63, v0
    v_readfirstlane_b32 s10, v1               ; wave
    s_and_b32 s11, s2, 7                      ; xcd
    s_lshr_b32 s12, s2, 3                     ; i
    s_and_b32 s13, s11, 3
    s_lshl_b32 s13, s13, 2
    s_and_b32 s14, s12, 3
    s_add_u32 s13, s13, s14                   ; rt
    s_lshr_b32 s14, s11, 2
    s_mul_i32 s14, s14, 7
    s_lshr_b32 s15, s12, 2
    s_add_u32 s14, s14, s15                   ; ct
    s_cmp_lt_u32 s10, 4
    s_cbranch_scc1 K1_compute""")
    e("""    s_sub_u32 s10, s10, 4                     ; lw
    v_lshrrev_b32 v1, 3, v0
    v_mul_u32_u24 v1, 1152, v1
    v_lshrrev_b32 v2, 4, v0
    v_and_b32 v3, 7, v0
    v_xor_b32 v3, v3, v2
    v_lshl_add_u32 v4, v3, 4, v1              ; vX0
    v_xor_b32 v5, 64, v4                      ; vX1
    v_mul_u32_u24 v1, 3456, v2
    v_and_b32 v3, 15, v0
    v_lshlrev_b32 v2, 2, v2
    v_xor_b32 v3, v3, v2
    v_lshl_add_u32 v6, v3, 4, v1              ; vW
    s_lshl_b32 s24, s13, 2
    s_add_u32 s24, s24, s10
    s_mul_i32 s24, s24, 36864
    s_mul_i32 s25, s10, 55296                 ; 16 lw * 3456
    s_lshl_b32 s26, s14, 8
    s_add_u32 s25, s25, s26                   ; sW
    s_lshl_b32 s26, s10, 12
    s_waitcnt lgkmcnt(0)""")
    srd(16, 4, 2359296)
    srd(20, 6, 1990656)
    def issue():
        for i in range(4):
            e(f"""    s_add_u32 m0, s26, {i*1024}
    s_add_u32 s27, s24, {i*9216}
    buffer_load_dwordx4 v{4+(i&1)}, s[16:19], s27 offen lds
    s_add_u32 m0, s26, {16384+i*1024}
    s_add_u32 s28, s25, {i*13824}
    buffer_load_dwordx4 v6, s[20:23], s28 offen lds""")
        e("""    s_add_u32 s24, s24, 128
    s_add_u32 s25, s25, 221184
    s_add_u32 s26, s26, 32768""")
    e("    s_mov_b32 s29, 0\nK1_ld0:")
    issue()
    e("""    s_add_u32 s29, s29, 1
    s_cmp_lt_u32 s29, 5
    s_cbranch_scc1 K1_ld0
    s_lshl_b32 s26, s10, 12
    s_waitcnt vmcnt(32)
    s_barrier
K1_ld1:
    s_waitcnt vmcnt(24)
    s_barrier""")
    issue()
    e("""    s_add_u32 s29, s29, 1
    s_cmp_lt_u32 s29, 9
    s_cbranch_scc1 K1_ld1
    s_waitcnt vmcnt(24)
    s_barrier
    s_waitcnt vmcnt(16)
    s_barrier
    s_waitcnt vmcnt(8)
    s_barrier
    s_waitcnt vmcnt(0)
    s_barrier
    s_endpgm""")
    XA = 8; WA = 12; F = [16, 32]; ACC = 48
    e(f"""K1_compute:
    s_and_b32 s11, s10, 1                     ; tw
    s_lshr_b32 s12, s10, 1                    ; cw
    v_and_b32 v1, 31, v0                      ; n
    v_lshrrev_b32 v2, 5, v0                   ; h
    v_bfe_u32 v3, v0, 1, 3                    ; f
    v_xor_b32 v3, v3, v2
    v_lshlrev_b32 v3, 4, v3
    v_lshl_add_u32 v3, v1, 7, v3
    s_lshl_b32 s15, s11, 13
    v_add_u32 v{XA}, s15, v3
    v_xor_b32 v{XA+1}, 32, v{XA}
    v_xor_b32 v{XA+2}, 64, v{XA}
    v_xor_b32 v{XA+3}, 0x60, v{XA}
    v_bfe_u32 v3, v0, 2, 2                    ; rr
    v_lshl_add_u32 v4, v2, 3, v3              ; 8h+rr
    v_lshlrev_b32 v4, 8, v4
    s_lshl_b32 s15, s12, 1
    v_xor_b32 v3, s15, v3
    v_lshl_add_u32 v4, v3, 6, v4
    v_bfe_u32 v3, v0, 4, 1
    v_lshl_add_u32 v4, v3, 5, v4
    v_and_b32 v3, 3, v0
    v_lshl_add_u32 v4, v3, 3, v4
    v_add_u32 v{WA}, 0x4000, v4
    v_xor_b32 v{WA+1}, 64, v{WA}""")
    for r in range(64): e(f"    v_mov_b32 v{ACC+r}, 0")
    e("""    s_lshl_b32 s15, s14, 1
    s_add_u32 s15, s15, s12
    s_mov_b32 s29, 0
    s_waitcnt lgkmcnt(0)""")
    srd(16, 8, WS_SIZE)
    def reads(s, f):
        out = []
        for a in range(2):
            out.append(f"    ds_read_b128 {vr(f+4*a,4)}, v{XA+s} offset:{a*4096}")
        for c in range(2):
            for t in range(2):
                out.append(f"    ds_read_b64_tr_b16 {vr(f+8+4*c+2*t,2)}, v{WA+c} offset:{(16*s+4*t)*256}")
        return out
    def mf(isv, f, c, a):
        acc = vr(ACC + 32*c + 16*a, 16); X = vr(f+4*a, 4); W = vr(f+8+4*c, 4)
        return f"    v_mfma_f32_32x32x16_bf16 {acc}, {X if isv else W}, {W if isv else X}, {acc}"
    e("    s_barrier")
    for x in reads(0, F[0]): e(x)
    e("""    s_cmp_ge_u32 s15, 18
    s_cbranch_scc1 K1_loopV""")
    for isv in (0, 1):
        lab = "K1_loopV" if isv else "K1_loopQ"
        e(f"{lab}:")
        for s in range(4):
            f = F[s & 1]; g = F[(s & 1) ^ 1]
            e("    s_waitcnt lgkmcnt(0)")
            e(mf(isv, f, 0, 0))
            if s < 3:
                for x in reads(s + 1, g): e(x)
                e(mf(isv, f, 0, 1))
                if s == 2:
                    e("""    s_cmp_eq_u32 s29, 4
    s_mov_b32 s30, 0x8000
    s_cselect_b32 s30, 0xfffe0000, s30""")
                    for r in range(6): e(f"    v_add_u32 v{XA+r}, s30, v{XA+r}")
                e(mf(isv, f, 1, 0))
                e(mf(isv, f, 1, 1))
            else:
                e(mf(isv, f, 0, 1))
                e("    s_barrier")
                for x in reads(0, g): e(x)
                e(mf(isv, f, 1, 0))
                e("""    s_add_u32 s29, s29, 1
    s_cmp_lt_u32 s29, 9""")
                e(mf(isv, f, 1, 1))
                e(f"    s_cbranch_scc1 {lab}")
        e(f"""    s_lshl_b32 s31, s13, 1
    s_add_u32 s31, s31, s11                   ; u
    s_mul_i32 s31, s31, 9216""")
        T = 16
        if not isv:
            e(f"""    s_cmp_lt_u32 s15, 9
    s_mov_b32 s33, 1.0
    s_cselect_b32 s33, {f2u(QSCALE):#x}, s33
    s_cselect_b32 s32, {QQ_OFF}, {KV_OFF}
    s_cselect_b32 s34, 0, 9
    s_add_u32 s32, s32, 2304
    s_sub_u32 s34, s15, s34
    s_lshl_b32 s34, s34, 4
    s_add_u32 s31, s31, s32
    v_add_u32 v3, s34, v2                     ; G0 + h
    v_lshlrev_b32 v1, 4, v1                   ; n*16
    s_movk_i32 s35, 7282
    s_mov_b32 s36, {294912 - 9*512}
    s_waitcnt lgkmcnt(0)""")
            for c in range(2):
                for b in range(4):
                    t = T + 4 * ((c*4+b) % 4)
                    e(f"""    v_add_u32 v4, {8*c+2*b}, v3
    v_mul_u32_u24 v5, s35, v4
    v_lshrrev_b32 v5, 16, v5                  ; pair
    v_lshl_add_u32 v4, v4, 9, v1
    v_mad_u32_u24 v{8+(c*4+b)%4}, v5, s36, v4""")
                    for a in range(2):
                        r = ACC + 32*c + 16*a + 4*b
                        for i in range(4): e(f"    v_mul_f32 v{r+i}, s33, v{r+i}")
                        e(f"    v_cvt_pk_bf16_f32 v{t+2*a}, v{r}, v{r+1}")
                        e(f"    v_cvt_pk_bf16_f32 v{t+2*a+1}, v{r+2}, v{r+3}")
                    e(f"    buffer_store_dwordx4 {vr(t,4)}, v{8+(c*4+b)%4}, s[16:19], s31 offen")
            e("    s_endpgm")
        else:
            e(f"""    s_cmp_ge_u32 s15, 27
    s_cbranch_scc1 K1_end
    s_sub_u32 s34, s15, 18
    s_lshl_b32 s34, s34, 6
    s_movk_i32 s35, 3641                      ; /18
    s_mov_b32 s36, 294912
    s_movk_i32 s37, 6912
    v_mul_u32_u24 v7, 288, v2                 ; h*288
    s_waitcnt lgkmcnt(0)""")
            for c in range(2):
                e(f"""    v_add_u32 v3, s34, v1
    v_add_u32 v3, {32*c}, v3                   ; col
    v_mul_u32_u24 v4, s35, v3
    v_lshrrev_b32 v4, 16, v4                  ; head
    v_mul_u32_u24 v5, 18, v4
    v_sub_u32 v5, v3, v5                      ; d
    v_lshl_add_u32 v5, v5, 4, v7
    v_and_b32 v6, 1, v4
    v_mad_u32_u24 v5, v6, s37, v5
    v_lshrrev_b32 v4, 1, v4
    v_mad_u32_u24 v{8+c}, v4, s36, v5""")
            for c in range(2):
                for b in range(4):
                    t = T + 4 * ((c*4+b) % 4)
                    for i in range(4):
                        e(f"    v_cvt_pk_bf16_f32 v{t+i}, v{ACC+32*c+4*b+i}, v{ACC+32*c+16+4*b+i}")
                    e(f"    buffer_store_dwordx4 {vr(t,4)}, v{8+c}, s[16:19], s31 offen offset:{576*b}")
    e("K1_end:\n    s_endpgm")

SA, SB, O0, O1, Q0, Q1, QR = 8, 40, 72, 88, 104, 108, 112
KF = [116, 120]; VF = [124, 132]; KR = [140, 142]; IDX = 114
AK, AV, AR = 4, 5, 6
POS = [2, 5, 13, 18, 22, 25, 29]
def kread(T, dst):
    u, a = T >> 1, T & 1
    return [f"    ds_read_b64 {vr(dst+2*t,2)}, v{AK} offset:{u*4864+t*512+a*256}" for t in range(2)]
def vread(T, dst):
    u, a = T >> 1, T & 1
    return ["    s_mov_b64 exec, s[40:41]"] + [f"    ds_read_b128 {vr(dst+4*t,4)}, v{AV} offset:{u*4864+(4*a+2*t)*288}" for t in range(2)] + ["    s_mov_b64 exec, -1"]
def rread(u, dst):
    return [f"    ds_read_b64 {vr(dst,2)}, v{AR} offset:{u*4864}"]
def pv(O, V, P): return f"    v_smfmac_f32_32x32x32_bf16 {vr(O,16)}, {vr(V,4)}, {vr(P,8)}, v{IDX}"
def qk(Y, K, Q): return f"    v_mfma_f32_32x32x16_bf16 {vr(Y,16)}, {vr(K,4)}, {vr(Q,4)}, {vr(Y,16)}"
def rem(Y, T): return f"    v_mfma_f32_32x32x4_2b_bf16 {vr(Y,32)}, {vr(KR[(T>>1)&1],2)}, {vr(QR,2)}, 0 cbsz:1 abid:{T&1}"
def attn_iter(t, extra=None):
    par = t & 1
    X, Y = (SA, SB) if par == 0 else (SB, SA)
    ev = {}
    def at(p, s): ev.setdefault(p, []).extend(s if isinstance(s, list) else [s])
    at(POS[0], pv(O1, VF[par^1]+4, Y+24))
    at(POS[0], vread(t+1, VF[par^1]))
    at(POS[0]+1, kread(t+2, KF[par]))
    nrd = 4
    if par == 1:
        pass
    at(POS[1], rem(Y, t+1))
    if par == 0:
        at(POS[1], rread((t >> 1) + 2, KR[(t >> 1) & 1])); nrd = 5
    at(POS[2], [f"    s_waitcnt lgkmcnt({nrd})", pv(O0, VF[par], X)])
    at(POS[3], pv(O0, VF[par]+4, X+8))
    at(POS[4], qk(Y, KF[par^1], Q0))
    at(POS[5], qk(Y+16, KF[par^1], Q1))
    at(POS[6], pv(O1, VF[par], X+16))
    if extra:
        for p, s in extra: at(p, s)
    for x in range(32):
        for s in ev.get(x, []): e(s)
        e(f"    v_exp_f32 v{X+x}, v{X+x}")
    for s in ev.get(32, []): e(s)

def k2():
    header("attn_kernel")
    e(f"""    s_cmp_ge_u32 s2, 256
    s_cbranch_scc1 K2_end
    s_load_dwordx2 s[8:9], s[0:1], 40         ; ws
    v_lshrrev_b32 v1, 6, v0
    v_and_b32 v0, 63, v0
    v_readfirstlane_b32 s10, v1               ; wave
    s_and_b32 s11, s2, 7
    s_lshr_b32 s12, s2, 3
    s_lshl_b32 s11, s11, 2
    s_lshr_b32 s13, s12, 3
    s_add_u32 s11, s11, s13                   ; head
    s_and_b32 s12, s12, 7                     ; j
    s_and_b32 s13, s10, 3                     ; qg
    s_lshr_b32 s14, s10, 2                    ; kh
    s_and_b32 s15, s11, 1                     ; par
    s_lshr_b32 s20, s11, 1
    s_mul_i32 s20, s20, 294912
    s_lshl_b32 s21, s12, 2
    s_add_u32 s21, s21, s13                   ; uq
    s_mul_i32 s22, s21, 9216
    s_add_u32 s22, s22, s20
    s_add_u32 s22, s22, {QQ_OFF+2304}
    s_mul_i32 s23, s15, 2560
    s_add_u32 s23, s23, s22
    v_and_b32 v1, 31, v0                      ; n
    v_lshrrev_b32 v2, 5, v0                   ; h
    v_lshlrev_b32 v3, 3, v1
    v_lshl_add_u32 v3, v2, 10, v3             ; hh*1024 + n*8
    s_lshl_b32 s24, s14, 8                    ; kh*256
    v_xor_b32 v4, s24, v3
    v_xor_b32 v5, 0x100, v4
    v_lshlrev_b32 v6, 3, v0
    v_xor_b32 v6, s24, v6
    v_lshlrev_b32 v7, 4, v0
    s_lshl_b32 s25, s14, 4
    s_add_u32 s25, s25, s13
    s_mul_i32 s26, s25, 9216
    s_add_u32 s26, s26, s20
    s_mul_i32 s27, s15, 4352
    s_add_u32 s26, s26, s27
    s_mul_i32 s27, s25, 4864
    s_waitcnt lgkmcnt(0)""")
    srd(16, 8, WS_SIZE)
    e(f"""    buffer_load_dwordx2 {vr(Q0,2)}, v4, s[16:19], s23 offen
    buffer_load_dwordx2 {vr(Q0+2,2)}, v4, s[16:19], s23 offen offset:512
    buffer_load_dwordx2 {vr(Q1,2)}, v5, s[16:19], s23 offen
    buffer_load_dwordx2 {vr(Q1+2,2)}, v5, s[16:19], s23 offen offset:512
    buffer_load_dwordx2 {vr(QR,2)}, v6, s[16:19], s22 offen offset:2048""")
    for i in range(4):
        e(f"""    s_add_u32 m0, s27, {i*4*4864}
    s_add_u32 s28, s26, {i*4*9216}""")
        for off in (0, 1024, 2048, 3072, 3840):
            e(f"    buffer_load_dwordx4 v7, s[16:19], s28 offen offset:{off} lds")
    e(f"""    s_mul_i32 s28, s14, {16*4864}
    s_cmp_eq_u32 s15, 0
    s_cselect_b32 s29, 1792, 0                ; K main - 512
    s_cselect_b32 s30, 0, 2560                ; V
    s_cselect_b32 s31, 4352, 0                ; rem
    s_add_u32 s29, s29, 512
    s_add_u32 s29, s29, s28
    s_add_u32 s30, s30, s28
    s_add_u32 s31, s31, s28
    v_add_u32 v{AK}, s29, v3
    v_mul_u32_u24 v{AV}, 288, v2
    v_lshl_add_u32 v{AV}, v1, 4, v{AV}
    v_add_u32 v{AV}, s30, v{AV}
    v_lshl_add_u32 v{AR}, v0, 3, s31
    s_mov_b32 s40, 0x3ffff
    s_mov_b32 s41, 0x3ffff
    v_mov_b32 v{IDX}, 0xdddddddd
    v_cmp_eq_u32 vcc, 18, v1
    v_mov_b32 v3, 0x3f803f80
    s_nop 0
    v_cndmask_b32 v3, 0, v3, vcc""")
    for r in range(16): e(f"    v_mov_b32 v{VF[0]+r}, v3")
    for r in range(32): e(f"    v_mov_b32 v{O0+r}, 0")
    for r in range(8): e(f"    v_mov_b32 v{SB+24+r}, 0")
    e(f"""    s_cmp_eq_u32 s15, 0
    s_cselect_b32 s28, -1, 0
    s_cselect_b32 s29, 0, -1
    s_waitcnt vmcnt(15)
    v_and_b32 v{QR}, s28, v{QR}
    v_and_b32 v{QR+1}, s29, v{QR+1}
    s_barrier""")
    for x in rread(0, KR[0]) + kread(0, KF[0]) + rread(1, KR[1]) + vread(0, VF[0]) + kread(1, KF[1]): e(x)
    e("    s_waitcnt lgkmcnt(5)")
    e(rem(SA, 0))
    e("    s_nop 15\n    s_nop 1")
    e(qk(SA, KF[0], Q0))
    e(qk(SA+16, KF[0], Q1))
    e("""    s_mov_b32 s29, 0
    s_nop 9
.p2align 6
K2_loop:""")
    for t in range(8):
        extra = []
        if t == 4:
            extra.append((0, """    s_cmp_lg_u32 s29, 0
    s_cbranch_scc1 K2_nobar
    s_waitcnt vmcnt(0)
    s_barrier
K2_nobar:"""))
        if t == 7:
            extra.append((8, [f"    v_add_u32 v{a}, {4*4864}, v{a}" for a in (AK, AV, AR)]))
            extra.append((30, "    s_add_u32 s29, s29, 1\n    s_cmp_lt_u32 s29, 4"))
            extra.append((32, "    s_cbranch_scc1 K2_loop"))
        attn_iter(t, extra)
    e("    s_nop 1")
    e(pv(O1, VF[1]+4, SB+24))
    e(f"""    s_mul_i32 s28, s10, 3072
    s_xor_b32 s29, s10, 4
    s_mul_i32 s29, s29, 3072
    v_add_u32 v4, s28, v7
    v_add_u32 v5, s29, v7
    s_waitcnt lgkmcnt(0)
    s_barrier
    s_nop 4""")
    for i in range(3): e(f"    ds_write_b128 v4, {vr(O1+4*i,4)} offset:{1024*i}")
    e("    s_waitcnt lgkmcnt(0)\n    s_barrier")
    for i in range(3): e(f"    ds_read_b128 {vr(SA+4*i,4)}, v5 offset:{1024*i}")
    e(f"""    s_lshl_b32 s28, s21, 5
    s_add_u32 s28, s28, s11
    s_mul_i32 s28, s28, 2304
    s_add_u32 s28, s28, {OO_OFF}
    s_lshl_b32 s29, s14, 10
    v_lshrrev_b32 v3, 4, v1
    v_lshlrev_b32 v3, 9, v3
    v_lshl_add_u32 v3, v2, 8, v3
    v_and_b32 v4, 15, v1
    v_lshl_add_u32 v3, v4, 4, v3
    v_add_u32 v3, s29, v3
    s_lshl_b32 s29, s14, 7
    v_lshl_add_u32 v4, v1, 2, s29
    s_waitcnt lgkmcnt(0)""")
    for r in range(11): e(f"    v_add_f32 v{O0+r}, v{O0+r}, v{SA+r}")
    e(f"""    v_mov_b32 v5, v{O0+10}
    s_nop 1
    v_permlane32_swap_b32 v5, v{O0+10}
    s_nop 0
    v_rcp_f32 v5, v5
    s_nop 0""")
    for r in range(10): e(f"    v_mul_f32 v{O0+r}, v5, v{O0+r}")
    for r in range(5): e(f"    v_cvt_pk_bf16_f32 v{SA+r}, v{O0+2*r}, v{O0+2*r+1}")
    e(f"""    buffer_store_dwordx4 {vr(SA,4)}, v3, s[16:19], s28 offen
    s_mov_b32 exec_hi, 0
    buffer_store_dword v{SA+4}, v4, s[16:19], s28 offen offset:2048
K2_end:
    s_endpgm""")

def k3():
    header("oproj_kernel")
    OF = 16
    WF = [52, 72]
    ACC = 92
    SCR = 90112
    e(f"""    s_cmp_ge_u32 s2, 256
    s_cbranch_scc1 K3_end
    s_load_dwordx4 s[4:7], s[0:1], 16
    s_load_dwordx2 s[8:9], s[0:1], 40         ; ws
    v_lshrrev_b32 v1, 6, v0
    v_and_b32 v0, 63, v0
    v_readfirstlane_b32 s10, v1               ; wave
    s_and_b32 s11, s2, 7
    s_lshr_b32 s12, s2, 3
    s_lshl_b32 s11, s11, 2
    s_and_b32 s13, s12, 3
    s_add_u32 s11, s11, s13                   ; u
    s_lshr_b32 s12, s12, 2                    ; nt
    s_and_b32 s13, s10, 3                     ; t16
    s_lshr_b32 s14, s10, 2                    ; kh
    v_mul_u32_u24 v1, 7282, v0
    v_lshrrev_b32 v1, 16, v1                  ; l/9
    v_mul_u32_u24 v2, 1008, v1                ; 1152-144
    v_lshl_add_u32 v2, v0, 4, v2
    s_mul_i32 s28, s10, 8064
    s_mul_i32 s29, s12, 144
    s_add_u32 s28, s28, s29
    s_mul_i32 s29, s10, 1008                  ; lds
    v_and_b32 v3, 15, v0                      ; tok16 / i
    v_lshrrev_b32 v4, 4, v0                   ; g
    v_lshrrev_b32 v5, 5, v0                   ; g>>1
    v_mul_u32_u24 v5, 2304, v5
    v_and_b32 v6, 31, v0
    v_lshl_add_u32 v5, v6, 4, v5
    v_mul_u32_u24 v6, 9216, v4
    v_lshl_add_u32 v6, v3, 2, v6
    s_lshl_b32 s30, s11, 1
    s_add_u32 s30, s30, s14
    s_mul_i32 s30, s30, 36864
    s_add_u32 s30, s30, {OO_OFF}
    s_lshl_b32 s31, s13, 6
    s_add_u32 s31, s31, s30
    s_add_u32 s31, s31, 2048
    s_lshl_b32 s32, s13, 9
    s_add_u32 s30, s30, s32
    s_waitcnt lgkmcnt(0)""")
    srd(16, 8, WS_SIZE)
    srd(20, 4, 663552)
    srd(24, 6, 2359296)
    for i in range(11):
        e(f"""    s_add_u32 m0, s29, {i*8064}
    s_add_u32 s33, s28, {i*64512}
    buffer_load_dwordx4 v2, s[20:23], s33 offen lds""")
    for s in range(8):
        e(f"""    s_add_u32 s33, s30, {s*4608}
    buffer_load_dwordx4 {vr(OF+4*s,4)}, v5, s[16:19], s33 offen""")
    for i in range(4):
        e(f"""    s_add_u32 s33, s31, {i*2304}
    buffer_load_dword v{OF+32+i}, v6, s[16:19], s33 offen""")
    e(f"""    v_lshrrev_b32 v7, 2, v3                   ; jj
    v_lshrrev_b32 v8, 1, v4
    v_mul_u32_u24 v8, 18, v8
    v_and_b32 v9, 1, v4
    v_lshl_add_u32 v8, v9, 2, v8
    v_add_u32 v8, v8, v7
    v_lshrrev_b32 v9, 1, v7
    v_lshl_add_u32 v9, v4, 2, v9
    v_mul_u32_u24 v9, 18, v9
    v_and_b32 v10, 1, v7
    v_add3_u32 v9, v9, v10, 16
    s_mul_i32 s33, s14, {288*144}
    v_and_b32 v10, 3, v0
    v_lshl_add_u32 v10, v10, 3, s33
    s_movk_i32 s34, 144
    v_mad_u32_u24 v8, v8, s34, v10
    v_mad_u32_u24 v9, v9, s34, v10""")
    for r in range(20): e(f"    v_mov_b32 v{ACC+r}, 0")
    e("    s_waitcnt vmcnt(12)\n    s_barrier")
    def wreads(s, f):
        out = []
        for c in range(5):
            for t in range(2):
                if s < 8: out.append(f"    ds_read_b64_tr_b16 {vr(f+4*c+2*t,2)}, v8 offset:{(36*s+8*t)*144+32*c}")
                else: out.append(f"    ds_read_b64_tr_b16 {vr(f+4*c+2*t,2)}, v9 offset:{(36*t)*144+32*c}")
        return out
    for x in wreads(0, WF[0]): e(x)
    for s in range(9):
        if s < 8:
            for x in wreads(s+1, WF[(s+1)&1]): e(x)
            e(f"    s_waitcnt vmcnt({11-s}) lgkmcnt(10)")
        else:
            e("    s_waitcnt vmcnt(0) lgkmcnt(0)")
        for c in range(5):
            e(f"    v_mfma_f32_16x16x32_bf16 {vr(ACC+4*c,4)}, {vr(WF[s&1]+4*c,4)}, {vr(OF+4*s,4)}, {vr(ACC+4*c,4)}")
    e(f"""    s_mul_i32 s33, s13, 5120
    s_add_u32 s33, s33, {SCR}
    v_lshl_add_u32 v7, v0, 4, s33
    s_cmp_eq_u32 s14, 0
    s_cbranch_scc1 K3_lo
    s_nop 3""")
    for c in range(5): e(f"    ds_write_b128 v7, {vr(ACC+4*c,4)} offset:{1024*c}")
    e("""    s_waitcnt lgkmcnt(0)
    s_barrier
    s_endpgm
K3_lo:
    s_barrier""")
    for c in range(5): e(f"    ds_read_b128 {vr(OF+4*c,4)}, v7 offset:{1024*c}")
    e(f"""    s_mul_i32 s33, s13, 2560
    s_add_u32 s33, s33, {SCR+20480}
    v_mul_u32_u24 v8, 160, v3
    v_lshl_add_u32 v8, v4, 3, v8
    v_add_u32 v8, s33, v8
    v_lshlrev_b32 v9, 4, v1
    v_lshl_add_u32 v9, v0, 4, v9
    v_add_u32 v9, s33, v9                     ; read addr: (l/9)*160 + (l%9)*16
    s_waitcnt lgkmcnt(0)""")
    for r in range(20): e(f"    v_add_f32 v{ACC+r}, v{ACC+r}, v{OF+r}")
    for r in range(10): e(f"    v_cvt_pk_bf16_f32 v{OF+r}, v{ACC+2*r}, v{ACC+2*r+1}")
    for c in range(5): e(f"    ds_write_b64 v8, {vr(OF+2*c,2)} offset:{32*c}")
    e("    s_waitcnt lgkmcnt(0)")
    for i in range(3): e(f"    ds_read_b128 {vr(ACC+4*i,4)}, v9 offset:{7*160*i}")
    e(f"""    s_mul_i32 s33, s11, 73728
    s_mul_i32 s34, s13, 9216
    s_add_u32 s33, s33, s34
    s_mul_i32 s34, s12, 144
    s_add_u32 s33, s33, s34
    v_mul_u32_u24 v3, 9, v1
    v_sub_u32 v3, v0, v3
    v_lshlrev_b32 v3, 4, v3
    s_movk_i32 s34, 1152""")
    for i in range(3):
        e(f"""    v_add_u32 v4, {7*i}, v1
    v_and_b32 v5, 1, v4
    v_lshrrev_b32 v4, 1, v4
    v_lshl_add_u32 v4, v5, 5, v4
    v_mad_u32_u24 v{10+i}, v4, s34, v3""")
    e(f"""    s_waitcnt lgkmcnt(0)
    buffer_store_dwordx4 {vr(ACC,4)}, v10, s[24:27], s33 offen
    buffer_store_dwordx4 {vr(ACC+4,4)}, v11, s[24:27], s33 offen
    s_mov_b32 exec_lo, 0x3ffff
    s_mov_b32 exec_hi, 0
    buffer_store_dwordx4 {vr(ACC+8,4)}, v12, s[24:27], s33 offen
K3_end:
    s_endpgm""")

def main(path, extra_launches=0):
    e("""; MHA block: x[2048,576] wqkv[576,1728] wo[576,576] -> out[2048,576], bf16, 32 heads of 18.
; @launch kernel=qkv_kernel grid=(224,1,1) block=(512,1,1) lds=163840
; @launch kernel=attn_kernel grid=(256,1,1) block=(512,1,1) lds=163840
; @launch kernel=oproj_kernel grid=(256,1,1) block=(512,1,1) lds=122880""")
    for i in range(extra_launches):
        e("; @launch kernel=nop_kernel grid=(256,1,1) block=(512,1,1) lds=0")
    e('.amdgcn_target "amdgcn-amd-amdhsa--gfx950"')
    k1(); k2(); k3()
    if extra_launches:
        header("nop_kernel"); e("    s_endpgm")
    descriptor("qkv_kernel", 112)
    descriptor("attn_kernel", 144)
    descriptor("oproj_kernel", 112)
    if extra_launches: descriptor("nop_kernel", 8)
    txt = "\n".join(L) + "\n"
    open(path, "w").write(txt)
    print("hazards:", check(txt))
if __name__ == "__main__":
    main(sys.argv[1], int(sys.argv[2]) if len(sys.argv) > 2 else 0)
```
